```python
import torch

def _softmax(x, axis=-1):
    return torch.softmax(x, dim=axis)
def _gelu(x):
    return torch.nn.functional.gelu(x, approximate="tanh")
def _silu(x):
    return torch.nn.functional.silu(x)
def _sigmoid(x):
    return torch.sigmoid(x)
def _layernorm(x, axis=-1, eps=1e-5):
    m = x.mean(dim=axis, keepdim=True)
    v = x.var(dim=axis, keepdim=True, unbiased=False)
    return (x - m) / torch.sqrt(v + eps)
def _scatter_add(tgt, idx, src, axis=0):
    return tgt.clone().index_add_(axis, idx, src)
def _segment_sum(src, seg, n):
    out = torch.zeros((n,) + src.shape[1:], dtype=src.dtype)
    return out.index_add_(0, seg, src)
def _pad(x, pw):
    flat = tuple(v for pair in reversed(pw) for v in pair)
    return torch.nn.functional.pad(x, flat)

kernel_name = 'recurrent_scan__sliding_block_cached__glu_gated_reglu__decode'

def setup_inputs():

    _w = (lambda a: (lambda t: t.to(torch.bfloat16) if t.is_floating_point() else t)(torch.as_tensor(a)))
    def _A_setup():
        B, Sq, D = 1, 1, 640
        Hq, Hkv, Sk, Dh = 32, 32, 32768, 192
        assert Hq % Hkv == 0, (Hq, Hkv)
        return {
            "x": _w((lambda *s: torch.randn(*s, dtype=torch.bfloat16) * 0.2)(B, Sq, D)),
            "k_cache": _w((lambda *s: torch.randn(*s, dtype=torch.bfloat16) * 1.6)(B, Hkv, Sk, Dh)),
            "v_cache": _w((lambda *s: torch.randn(*s, dtype=torch.bfloat16) * 1.6)(B, Hkv, Sk, Dh)),
            "wq": _w((lambda *s: torch.randn(*s, dtype=torch.bfloat16) * 1.6)(D, Hq * Dh) * (D ** -0.5)),
            "wo": _w((lambda *s: torch.randn(*s, dtype=torch.bfloat16) * 1.6)(Hq * Dh, D) * ((Hq * Dh) ** -0.5)),
        }
    _A_in = _A_setup()

    def _B_setup():
        B, S, D, F = 1, 1, 640, 1536
        return {
            "x": _w((lambda *s: torch.randn(*s, dtype=torch.bfloat16) * 0.2)(B, S, D)),
            "W_gate": _w((lambda *s: torch.randn(*s, dtype=torch.bfloat16) * 0.8)(D, F) * (2.0 / D) ** 0.5),
            "W_up": _w((lambda *s: torch.randn(*s, dtype=torch.bfloat16) * 0.8)(D, F) * (2.0 / D) ** 0.5),
            "W_down": _w((lambda *s: torch.randn(*s, dtype=torch.bfloat16) * 0.8)(F, D) * (1.0 / F) ** 0.5),
        }
    _B_in = _B_setup()

    return {
        "A_x": _A_in["x"],
        "A_k_cache": _A_in["k_cache"],
        "A_v_cache": _A_in["v_cache"],
        "A_wq": _A_in["wq"],
        "A_wo": _A_in["wo"],
        "B_x": _B_in["x"],
        "B_W_gate": _B_in["W_gate"],
        "B_W_up": _B_in["W_up"],
        "B_W_down": _B_in["W_down"],
    }

def reference(A_x, A_k_cache, A_v_cache, A_wq, A_wo, B_x, B_W_gate, B_W_up, B_W_down):
    def _A_ref(x, k_cache, v_cache, wq, wo):
        B, Sq, D = x.shape
        Hq, Dh = 32, 192
        Hkv, Sk = k_cache.shape[1], k_cache.shape[2]
        W = min(4096, max(256, Sk // 4))
        rep = Hq // Hkv
        q = (lambda x, *d: x.permute(*d))((x @ wq).reshape(B, Sq, Hq, Dh), 0, 2, 1, 3)
        k = (lambda x, n, axis: torch.repeat_interleave(x, n, dim=axis))(k_cache[:, :, Sk - W:, :], rep, axis=1)
        v = (lambda x, n, axis: torch.repeat_interleave(x, n, dim=axis))(v_cache[:, :, Sk - W:, :], rep, axis=1)
        scores = torch.einsum("bhqd,bhkd->bhqk", q, k) * (Dh ** -0.5)
        p = _softmax(scores, axis=-1)
        o = torch.einsum("bhqk,bhkd->bhqd", p, v)
        return (lambda x, *d: x.permute(*d))(o, 0, 2, 1, 3).reshape(B, Sq, Hq * Dh) @ wo

    def _B_ref(x, W_gate, W_up, W_down):
        gate = torch.einsum("bsd,df->bsf", x, W_gate)
        up = torch.einsum("bsd,df->bsf", x, W_up)
        gate = gate * (lambda x, dt: x.to(dt))(gate > 0, gate.dtype)
        h = gate * up
        return torch.einsum("bsf,fd->bsd", h, W_down)

    x = A_x
    xn = _layernorm(x, axis=-1)
    s = _A_ref(xn, A_k_cache, A_v_cache, A_wq, A_wo)
    g = _silu(_B_ref(xn, B_W_gate, B_W_up, B_W_down))
    return x + s * g
```

```python
import sys
KNAME = "recurrent_scan__sliding_block_cached__glu_gated_reglu__decode_kernel"

def header(grid, block, lds):
    return f"""; @launch grid=({grid},1,1) block=({block},1,1) lds={lds}
.amdgcn_target "amdgcn-amd-amdhsa--gfx950"
.text
.globl {KNAME}
.p2align 8
.type {KNAME},@function
{KNAME}:
"""
def footer(vgpr, sgpr=102, accum=None):
    if accum is None: accum = min(256, (vgpr + 3)//4*4)
    return f"""s_endpgm
.section .rodata,"a"
.p2align 6
.amdhsa_kernel {KNAME}
  .amdhsa_next_free_vgpr {vgpr}
  .amdhsa_next_free_sgpr {sgpr}
  .amdhsa_accum_offset {accum}
  .amdhsa_group_segment_fixed_size 0
  .amdhsa_kernarg_size 96
  .amdhsa_user_sgpr_count 2
  .amdhsa_user_sgpr_kernarg_segment_ptr 1
  .amdhsa_system_sgpr_workgroup_id_x 1
.end_amdhsa_kernel
"""

def gen(nw=8, depth=6, flags="nt", mode="reg", layout="rc", nwg=256, rot=0, ringregs=None, total_rows=512, xcdmap=0):
    L = []
    a = L.append
    rows_per_wave = total_rows // nw
    groups = rows_per_wave // 8
    nloads = groups * 3
    a("s_memrealtime s[10:11]")
    a("s_load_dwordx4 s[4:7], s[0:1], 8")
    a("s_load_dwordx2 s[8:9], s[0:1], 88")
    a(f"s_cmp_ge_u32 s2, {nwg}")
    a("s_cbranch_scc1 L_end")
    if xcdmap:
        a("s_and_b32 s20, s2, 7")
        a("s_lshl_b32 s20, s20, 2")
        a("s_lshr_b32 s21, s2, 6")
        a("s_add_u32 s20, s20, s21")
        a("s_lshr_b32 s21, s2, 3")
        a("s_and_b32 s21, s21, 7")
    else:
        a("s_lshr_b32 s20, s2, 3")
        a("s_and_b32 s21, s2, 7")
    a("s_mul_i32 s20, s20, 12582912")
    a("s_mul_i32 s21, s21, 196608")
    a("s_add_u32 s20, s20, s21")
    a("s_add_u32 s20, s20, 11010048")
    a("v_lshrrev_b32 v1, 6, v0")
    a("v_and_b32 v2, 63, v0")
    a("s_nop 0")
    a("v_readfirstlane_b32 s22, v1")
    if layout == "rc":
        a("v_lshrrev_b32 v3, 3, v2")
        a("v_and_b32 v4, 7, v2")
        a("v_mul_u32_u24 v3, 384, v3")
        a("v_lshl_add_u32 v3, v4, 4, v3")
    else:
        a("v_lshlrev_b32 v3, 4, v2")
    a(f"s_mul_i32 s23, s22, {rows_per_wave*384}")
    a("v_add_u32 v3, s23, v3")
    a("s_waitcnt lgkmcnt(0)")
    a("s_add_u32 s12, s4, s20")
    a("s_addc_u32 s13, s5, 0")
    a("s_and_b32 s13, s13, 0xffff")
    a(f"s_mov_b32 s14, {total_rows*384}")
    a("s_mov_b32 s15, 0x20000")
    a("s_add_u32 s16, s6, s20")
    a("s_addc_u32 s17, s7, 0")
    a("s_and_b32 s17, s17, 0xffff")
    a(f"s_mov_b32 s18, {total_rows*384}")
    a("s_mov_b32 s19, 0x20000")
    for g in range(groups):
        a(f"s_mov_b32 s{24+g}, {g*3072}")
    if mode == "lds":
        slots = ringregs or 8
        a(f"s_mul_i32 s40, s22, {slots*1024}")
        a("s_add_u32 s40, s40, 2048")
    loads = []
    for m in range(2):
        srd = "s[12:15]" if m == 0 else "s[16:19]"
        for g in range(groups):
            for t in range(3):
                loads.append((srd, g, t))
    first_reg = 8
    nring = ringregs or len(loads)
    for i, (srd, g, t) in enumerate(loads):
        if i >= depth:
            a(f"s_waitcnt vmcnt({depth-1})")
        off = t*128 if layout == "rc" else t*1024
        if mode == "reg":
            r = first_reg + 4*(i % nring)
            a(f"buffer_load_dwordx4 v[{r}:{r+3}], v3, {srd}, s{24+g} offen offset:{off} {flags}")
        else:
            slots = ringregs or 8
            a(f"s_add_u32 s41, s40, {(i % slots)*1024}")
            a(f"s_sub_u32 m0, s41, {off}") if off else a("s_mov_b32 m0, s41")
            a("s_nop 0")
            a(f"buffer_load_dwordx4 v3, {srd}, s{24+g} offen offset:{off} {flags} lds")
    a("s_waitcnt vmcnt(0)")
    a("s_barrier")
    a("s_memrealtime s[44:45]")
    a("s_waitcnt lgkmcnt(0)")
    a("s_getreg_b32 s50, hwreg(HW_REG_XCC_ID)")
    a("s_getreg_b32 s51, hwreg(HW_REG_HW_ID)")
    a("v_mov_b32 v8, s50")
    a("v_mov_b32 v9, s51")
    a("v_mov_b32 v4, s10")
    a("v_mov_b32 v5, s11")
    a("v_mov_b32 v6, s44")
    a("v_mov_b32 v7, s45")
    a("s_lshl_b32 s46, s2, 5")
    a("v_mov_b32 v1, s46")
    a("v_cmp_eq_u32 vcc, 0, v0")
    a("s_and_saveexec_b64 s[48:49], vcc")
    a("s_cbranch_execz L_end")
    a("global_store_dwordx4 v1, v[4:7], s[8:9]")
    a("global_store_dwordx2 v1, v[8:9], s[8:9] offset:16")
    a("L_end:")
    if mode == "reg":
        vg = first_reg + 4*nring
    else:
        vg = 16
    lds = 0
    if mode == "lds":
        lds = max(nw * (ringregs or 8) * 1024 + 2048, 81920+1024)
    else:
        lds = 81920 + 1024
    vg = max(vg, 16)
    acc = min(256, (vg+3)//4*4)
    return header(nwg, nw*64, lds) + "\n".join("    "+x if not x.endswith(":") else x for x in L) + "\n" + footer(vg, 64, acc)

if __name__ == "__main__":
    import itertools, os
    out = sys.argv[1]
    os.makedirs(out, exist_ok=True)
    specs = eval(open(sys.argv[2]).read())
    for name, kw in specs.items():
        open(os.path.join(out, name + ".s"), "w").write(gen(**kw))
        print(name)
```

```python
import sys
sys.path.insert(0, "tools")
from gen_stream import header, footer
def gen(ninstr=2048, nw=1, nwg=256, prefetch=False, enc8=False):
    L=[];a=L.append
    a("s_load_dwordx2 s[8:9], s[0:1], 88")
    a(f"s_cmp_ge_u32 s2, {nwg}")
    a("s_cbranch_scc1 L_end")
    a("s_mov_b32 s20, 0")
    a("s_waitcnt lgkmcnt(0)")
    if prefetch:
        a("s_getpc_b64 s[30:31]")
        a("v_lshlrev_b32 v10, 7, v0")
        a("v_and_b32 v10, 0x1fff, v10")
        n = (ninstr*(8 if enc8 else 4) + 8191)//8192
        for i in range(n+0):
            a(f"global_load_dword v11, v10, s[30:31]")
            a("s_add_u32 s30, s30, 8192")
            a("s_addc_u32 s31, s31, 0")
        a("s_waitcnt vmcnt(0)")
    a("L_loop:")
    a("s_memtime s[10:11]")
    a("s_waitcnt lgkmcnt(0)")
    for i in range(ninstr):
        if enc8:
            a(f"v_add3_u32 v{2+(i%8)}, v1, v1, v1")
        else:
            a(f"v_add_u32 v{2+(i%8)}, v1, v1")
    a("s_memtime s[12:13]")
    a("s_waitcnt lgkmcnt(0)")
    a("s_sub_u32 s14, s12, s10")
    a("s_cmp_eq_u32 s20, 0")
    a("s_cselect_b32 s21, s14, s21")
    a("s_cmp_eq_u32 s20, 1")
    a("s_cselect_b32 s22, s14, s22")
    a("s_add_u32 s20, s20, 1")
    a("s_cmp_lt_u32 s20, 2")
    a("s_cbranch_scc1 L_loop")
    a("v_mov_b32 v4, s21")
    a("v_mov_b32 v5, s22")
    a("s_lshl_b32 s46, s2, 3")
    a("v_mov_b32 v1, s46")
    a("v_cmp_eq_u32 vcc, 0, v0")
    a("s_and_saveexec_b64 s[48:49], vcc")
    a("s_cbranch_execz L_end")
    a("global_store_dwordx2 v1, v[4:5], s[8:9]")
    a("L_end:")
    return header(nwg, nw*64, 81920+1024) + "\n".join("    "+x if not x.endswith(":") else x for x in L) + "\n" + footer(16, 64, 16)
if __name__ == "__main__":
    import os
    os.makedirs("exp/ic", exist_ok=True)
    for name, kw in dict(a_w1=dict(nw=1), a_w8=dict(nw=8), a_w1_pf=dict(nw=1,prefetch=True), a_w8_pf=dict(nw=8,prefetch=True),
                         b_w1_e8=dict(nw=1,enc8=True), b_w8_e8=dict(nw=8,enc8=True), b_w8_e8_pf=dict(nw=8,enc8=True,prefetch=True),
                         c_w1_n32=dict(nw=1,nwg=8), c_w1_n32_pf=dict(nw=1,nwg=8,prefetch=True)).items():
        open(f"exp/ic/{name}.s","w").write(gen(**kw))
```
